```python
import torch

def _softmax(x, axis=-1):
    return torch.softmax(x, dim=axis)
def _gelu(x):
    return torch.nn.functional.gelu(x, approximate="tanh")
def _silu(x):
    return torch.nn.functional.silu(x)
def _sigmoid(x):
    return torch.sigmoid(x)
def _layernorm(x, axis=-1, eps=1e-5):
    m = x.mean(dim=axis, keepdim=True)
    v = x.var(dim=axis, keepdim=True, unbiased=False)
    return (x - m) / torch.sqrt(v + eps)
def _scatter_add(tgt, idx, src, axis=0):
    return tgt.clone().index_add_(axis, idx, src)
def _segment_sum(src, seg, n):
    out = torch.zeros((n,) + src.shape[1:], dtype=src.dtype)
    return out.index_add_(0, seg, src)
def _pad(x, pw):
    flat = tuple(v for pair in reversed(pw) for v in pair)
    return torch.nn.functional.pad(x, flat)

kernel_name = 'standalone__sliding_block_cached__decode'

def setup_inputs():

    _w = (lambda a: (lambda t: t.to(torch.bfloat16) if t.is_floating_point() else t)(torch.as_tensor(a)))
    B, Sq, D = 8, 1, 512
    Hq, Hkv, Sk, Dh = 32, 8, 4096, 128
    assert Hq % Hkv == 0, (Hq, Hkv)
    return {
        "x": _w((lambda *s: torch.randn(*s, dtype=torch.bfloat16) * 0.8)(B, Sq, D)),
        "k_cache": _w((lambda *s: torch.randn(*s, dtype=torch.bfloat16) * 0.8)(B, Hkv, Sk, Dh)),
        "v_cache": _w((lambda *s: torch.randn(*s, dtype=torch.bfloat16) * 0.05)(B, Hkv, Sk, Dh)),
        "wq": _w((lambda *s: torch.randn(*s, dtype=torch.bfloat16) * 0.8)(D, Hq * Dh) * (D ** -0.5)),
        "wo": _w((lambda *s: torch.randn(*s, dtype=torch.bfloat16) * 0.05)(Hq * Dh, D) * ((Hq * Dh) ** -0.5)),
    }

def reference(x, k_cache, v_cache, wq, wo):
    B, Sq, D = x.shape
    Hq, Dh = 32, 128
    Hkv, Sk = k_cache.shape[1], k_cache.shape[2]
    W = min(4096, max(256, Sk // 4))
    rep = Hq // Hkv
    q = (lambda x, *d: x.permute(*d))((x @ wq).reshape(B, Sq, Hq, Dh), 0, 2, 1, 3)
    k = (lambda x, n, axis: torch.repeat_interleave(x, n, dim=axis))(k_cache[:, :, Sk - W:, :], rep, axis=1)
    v = (lambda x, n, axis: torch.repeat_interleave(x, n, dim=axis))(v_cache[:, :, Sk - W:, :], rep, axis=1)
    scores = torch.einsum("bhqd,bhkd->bhqk", q, k) * (Dh ** -0.5)
    p = _softmax(scores, axis=-1)
    o = torch.einsum("bhqk,bhkd->bhqd", p, v)
    return (lambda x, *d: x.permute(*d))(o, 0, 2, 1, 3).reshape(B, Sq, Hq * Dh) @ wo
```

```python
import sys, math, struct
NAME = "standalone__sliding_block_cached__decode_kernel"
HDR = open("standalone__sliding_block_cached__decode.s.ref").read().split("; Override launch")[0]

def f32bits(x): return struct.unpack("<I", struct.pack("<f", x))[0]

EPOCH = 0
QBOX = 0x1000
SBOX = 0x40000
OBOX = 0x80000
FBOX = 0x200000
STAMP = 128 << 20
WQ_LDS = 0
WO_LDS = 16384
OPART = 32768
QBUF = 40960
STATS = 41984
ABUF = 42240
LDS_BYTES = 43264
SPIN_MAX = 20000

def gen(ld="nt", stamps=False, ldw="nt"):
    L = []
    e = L.append
    nst = [0]
    def stamp(i):
        if stamps: e(f"s_memrealtime s[{60+2*i}:{61+2*i}]")
    e(HDR.rstrip())
    e(f"; @launch grid=(256,1,1) block=(320,1,1) lds={LDS_BYTES}")
    e('.amdgcn_target "amdgcn-amd-amdhsa--gfx950"')
    e(".text"); e(f".globl {NAME}"); e(".p2align 8"); e(f".type {NAME},@function"); e(f"{NAME}:")
    stamp(0)
    e("s_cmp_ge_u32 s2, 256"); e("s_cbranch_scc1 L_end")
    e("s_load_dwordx16 s[4:19], s[0:1], 0")
    e("v_lshrrev_b32 v1, 6, v0")
    e("v_and_b32 v0, 63, v0")
    e("s_and_b32 s20, s2, 7")
    e("v_readfirstlane_b32 s24, v1")
    e("s_lshr_b32 s21, s2, 3")
    e("s_lshr_b32 s22, s21, 2")
    e("s_and_b32 s23, s21, 3")
    e("v_and_b32 v1, 15, v0")
    e("v_lshrrev_b32 v2, 4, v0")
    e("s_cmp_eq_u32 s24, 0")
    e("s_cbranch_scc1 L_sync")
    e("s_sub_u32 s24, s24, 1")
    e("s_lshl_b32 s26, s22, 3"); e("s_add_u32 s26, s26, s20"); e("s_lshl_b32 s26, s26, 20")
    e("s_lshl_b32 s27, s23, 16"); e("s_add_u32 s26, s26, s27")
    e("s_lshl_b32 s27, s24, 14"); e("s_add_u32 s26, s26, s27")
    e(f"s_add_u32 s26, s26, {3072*256}")
    e("v_and_b32 v3, 3, v1"); e("v_lshlrev_b32 v3, 10, v3")
    e("v_lshrrev_b32 v4, 2, v1"); e("v_lshl_add_u32 v3, v4, 8, v3"); e("v_lshl_add_u32 v3, v2, 4, v3")
    e("v_lshlrev_b32 v4, 4, v0")
    e("v_lshrrev_b32 v5, 2, v0"); e("v_lshlrev_b32 v5, 10, v5"); e("v_and_b32 v6, 3, v0"); e("v_lshl_add_u32 v5, v6, 4, v5")
    e("s_lshl_b32 s28, s20, 19"); e("s_lshl_b32 s29, s22, 16"); e("s_add_u32 s28, s28, s29")
    e("s_lshl_b32 s29, s23, 8"); e("s_add_u32 s28, s28, s29"); e("s_lshl_b32 s29, s24, 6"); e("s_add_u32 s28, s28, s29")
    e("s_waitcnt lgkmcnt(0)")
    stamp(1)
    e("s_add_u32 s30, s6, s26"); e("s_addc_u32 s31, s7, 0")
    e("s_add_u32 s32, s8, s26"); e("s_addc_u32 s33, s9, 0")
    KR = 16; VR = 80
    for T in range(4):
        for t in range(4):
            r = KR + (T*4+t)*4
            e(f"global_load_dwordx4 v[{r}:{r+3}], v3, s[30:31] offset:{t*64} {ld}")
        if T < 3:
            e("s_add_u32 s30, s30, 4096"); e("s_addc_u32 s31, s31, 0")
    e("s_load_dword s25, s[18:19], 0")
    for i in range(16):
        r = VR + i*4
        e(f"global_load_dwordx4 v[{r}:{r+3}], v4, s[32:33] offset:{(i%4)*1024} {ld}")
        if i % 4 == 3 and i < 15:
            e("s_add_u32 s32, s32, 4096"); e("s_addc_u32 s33, s33, 0")
    e("s_add_u32 s34, s12, s28"); e("s_addc_u32 s35, s13, 0")
    e("s_lshl_b32 s29, s24, 12"); e(f"s_add_u32 s29, s29, {WO_LDS}")
    for i in range(4):
        e(f"s_add_u32 m0, s29, {i*1024}")
        e("s_nop 0")
        e(f"global_load_lds_dwordx4 v5, s[34:35] {ldw}")
        if i < 3:
            e("s_add_u32 s34, s34, 16384"); e("s_addc_u32 s35, s35, 0")
    stamp(2)
    e("s_waitcnt lgkmcnt(0)")
    e("s_mul_i32 s25, s25, 0x9E3779B1"); e("s_add_u32 s25, s25, 0x7F4A7C15")
    e("v_lshrrev_b32 v6, 2, v1"); e("v_lshlrev_b32 v7, 8, v6"); e("v_lshl_add_u32 v7, v2, 4, v7")
    e(f"s_mov_b32 s36, {f32bits(128**-0.5 * math.log2(math.e))}")
    e("s_mov_b32 s37, 0x05040100"); e("s_mov_b32 s38, 0x07060302")
    e("s_barrier")
    QF = 144
    for t in range(4):
        e(f"ds_read_b128 v[{QF+4*t}:{QF+4*t+3}], v7 offset:{QBUF + t*64}")
    stamp(3)
    SR = 160
    e("s_waitcnt lgkmcnt(0)")
    for T in range(4):
        e(f"s_waitcnt vmcnt({20 + 16 - 4*(T+1)})")
        for t in range(4):
            r = KR + (T*4+t)*4
            c = "0" if t == 0 else f"v[{SR+4*T}:{SR+4*T+3}]"
            e(f"v_mfma_f32_16x16x32_bf16 v[{SR+4*T}:{SR+4*T+3}], v[{r}:{r+3}], v[{QF+4*t}:{QF+4*t+3}], {c}")
    e("s_nop 7")
    e(f"v_max3_f32 v8, v{SR}, v{SR+1}, v{SR+2}")
    for i in range(3, 15, 2):
        e(f"v_max3_f32 v8, v8, v{SR+i}, v{SR+i+1}")
    e(f"v_max_f32 v8, v8, v{SR+15}")
    e("v_mov_b32 v9, v8"); e("s_nop 1")
    e("v_permlane16_swap_b32 v8, v9"); e("v_max_f32 v8, v8, v9")
    e("v_mov_b32 v9, v8"); e("s_nop 1")
    e("v_permlane32_swap_b32 v8, v9"); e("v_max_f32 v8, v8, v9")
    e("v_mul_f32 v8, s36, v8")
    for i in range(16):
        e(f"v_fma_f32 v{SR+i}, v{SR+i}, s36, -v8")
    for i in range(16):
        e(f"v_exp_f32 v{SR+i}, v{SR+i}")
    e("s_nop 0")
    e(f"v_add_f32 v9, v{SR}, v{SR+1}"); e(f"v_add_f32 v10, v{SR+2}, v{SR+3}")
    for i in range(4, 16, 2):
        e(f"v_add_f32 v9, v9, v{SR+i}"); e(f"v_add_f32 v10, v10, v{SR+i+1}")
    e("v_add_f32 v9, v9, v10")
    e("v_mov_b32 v10, v9"); e("s_nop 1")
    e("v_permlane16_swap_b32 v9, v10"); e("v_add_f32 v9, v9, v10")
    e("v_mov_b32 v10, v9"); e("s_nop 1")
    e("v_permlane32_swap_b32 v9, v10"); e("v_add_f32 v9, v9, v10")
    e("v_lshlrev_b32 v10, 5, v6"); e("s_lshl_b32 s39, s24, 3"); e("v_add_u32 v11, s39, v10")
    e(f"ds_write_b64 v11, v[8:9] offset:{STATS}")
    e("s_waitcnt lgkmcnt(0)")
    e("s_barrier")
    e(f"ds_read_b128 v[{QF}:{QF+3}], v10 offset:{STATS}")
    e(f"ds_read_b128 v[{QF+4}:{QF+7}], v10 offset:{STATS+16}")
    e("s_waitcnt lgkmcnt(0)")
    e(f"v_max3_f32 v11, v{QF}, v{QF+2}, v{QF+4}"); e(f"v_max_f32 v11, v11, v{QF+6}")
    for w in range(4):
        e(f"v_sub_f32 v{QF+2*w}, v{QF+2*w}, v11")
    e("v_sub_f32 v8, v8, v11")
    for w in range(4):
        e(f"v_exp_f32 v{QF+2*w}, v{QF+2*w}")
    e("v_exp_f32 v8, v8")
    e(f"v_mul_f32 v12, v{QF}, v{QF+1}")
    for w in range(1, 4):
        e(f"v_fmac_f32 v12, v{QF+2*w}, v{QF+2*w+1}")
    e("v_rcp_f32 v12, v12"); e("s_nop 0")
    e("v_mul_f32 v8, v8, v12")
    for i in range(16):
        e(f"v_mul_f32 v{SR+i}, v{SR+i}, v8")
    PF = 144
    for i in range(8):
        e(f"v_cvt_pk_bf16_f32 v{PF+i}, v{SR+2*i}, v{SR+2*i+1}")
    stamp(4)
    OA = 176
    TP = KR
    for kb in range(2):
        e(f"s_waitcnt vmcnt({4 + 8*(1-kb)})")
        for j in range(8):
            for u in range(4):
                lo = VR + (kb*8 + 2*u)*4 + (j >> 1); hi = VR + (kb*8 + 2*u+1)*4 + (j >> 1)
                e(f"v_perm_b32 v{TP + kb*32 + j*4 + u}, v{hi}, v{lo}, s{37 + (j&1)}")
            if j >= 1:
                jj = j-1
                c = "0" if kb == 0 else f"v[{OA+4*jj}:{OA+4*jj+3}]"
                e(f"v_mfma_f32_16x16x32_bf16 v[{OA+4*jj}:{OA+4*jj+3}], v[{PF+4*kb}:{PF+4*kb+3}], v[{TP+kb*32+jj*4}:{TP+kb*32+jj*4+3}], {c}")
        e("s_nop 1")
        jj = 7
        c = "0" if kb == 0 else f"v[{OA+4*jj}:{OA+4*jj+3}]"
        e(f"v_mfma_f32_16x16x32_bf16 v[{OA+4*jj}:{OA+4*jj+3}], v[{PF+4*kb}:{PF+4*kb+3}], v[{TP+kb*32+jj*4}:{TP+kb*32+jj*4+3}], {c}")
    stamp(5)
    e("v_lshlrev_b32 v10, 2, v0"); e("s_lshl_b32 s39, s24, 11"); e(f"s_add_u32 s39, s39, {OPART}"); e("v_add_u32 v11, s39, v10")
    e("v_lshrrev_b32 v12, 3, v1"); e("v_lshl_add_u32 v12, v2, 1, v12"); e("v_lshlrev_b32 v12, 14, v12")
    e("v_and_b32 v13, 7, v1"); e("v_lshl_add_u32 v12, v13, 4, v12")
    e("s_lshl_b32 s40, s20, 17"); e("s_lshl_b32 s41, s21, 9"); e("s_add_u32 s40, s40, s41"); e("s_lshl_b32 s41, s24, 7"); e("s_add_u32 s40, s40, s41")
    e(f"s_add_u32 s40, s40, {OBOX}"); e("s_add_u32 s40, s18, s40"); e("s_addc_u32 s41, s19, 0")
    for jp in range(4):
        e(f"ds_write2st64_b32 v11, v{OA+8*jp}, v{OA+8*jp+4} offset0:{2*jp} offset1:{2*jp+1}")
    e("s_waitcnt lgkmcnt(0)")
    e("s_barrier")
    e("s_lshl_b32 s39, s24, 9"); e(f"s_add_u32 s39, s39, {OPART}"); e("v_add_u32 v11, s39, v10")
    for w in range(4):
        e(f"ds_read2st64_b32 v[{16+2*w}:{17+2*w}], v11 offset0:{8*w} offset1:{8*w+1}")
    e("v_mov_b32 v25, s25"); e("v_mov_b32 v27, s25")
    e("s_waitcnt lgkmcnt(0)")
    e("v_add_f32 v16, v16, v18"); e("v_add_f32 v20, v20, v22"); e("v_add_f32 v17, v17, v19"); e("v_add_f32 v21, v21, v23")
    e("v_add_f32 v24, v16, v20"); e("v_add_f32 v26, v17, v21")
    e("global_store_dwordx4 v12, v[24:27], s[40:41] sc1")
    stamp(6)
    e("v_lshrrev_b32 v14, 5, v0"); e("v_and_b32 v15, 31, v0")
    e("v_lshlrev_b32 v28, 11, v14"); e("v_lshl_add_u32 v28, v15, 4, v28")
    e("s_lshl_b32 s42, s20, 17"); e("s_lshl_b32 s43, s22, 14"); e("s_add_u32 s42, s42, s43"); e("s_lshl_b32 s43, s24, 12"); e("s_add_u32 s42, s42, s43")
    e(f"s_add_u32 s42, s42, {OBOX}"); e("s_add_u32 s42, s18, s42"); e("s_addc_u32 s43, s19, 0")
    e("v_lshlrev_b32 v29, 5, v14")
    e("s_lshl_b32 s44, s20, 10"); e("s_lshr_b32 s45, s22, 1"); e("s_lshl_b32 s45, s45, 8"); e("s_add_u32 s44, s44, s45"); e("s_lshl_b32 s45, s24, 6"); e("s_add_u32 s44, s44, s45")
    e(f"s_add_u32 s44, s44, {SBOX}"); e("s_add_u32 s44, s18, s44"); e("s_addc_u32 s45, s19, 0")
    e("v_and_b32 v30, 7, v15"); e("v_lshlrev_b32 v30, 4, v30"); e("v_lshrrev_b32 v31, 3, v15"); e("v_lshl_add_u32 v30, v31, 2, v30")
    e("v_lshl_add_u32 v30, v14, 7, v30"); e("s_lshl_b32 s39, s24, 8"); e("v_add_u32 v30, s39, v30")
    e("v_lshrrev_b32 v31, 2, v1"); e("v_lshl_add_u32 v31, v2, 3, v31"); e("v_lshlrev_b32 v31, 6, v31"); e("v_and_b32 v32, 3, v1"); e("v_lshl_add_u32 v31, v32, 3, v31")
    e("v_add_u32 v31, s29, v31")
    e("v_and_b32 v32, 7, v1"); e("v_lshlrev_b32 v33, 7, v32"); e("v_lshl_add_u32 v33, v2, 4, v33")
    e("v_lshlrev_b32 v34, 18, v32"); e("v_lshrrev_b32 v35, 3, v1"); e("v_lshl_add_u32 v34, v35, 13, v34"); e("v_lshl_add_u32 v34, v2, 4, v34")
    e("s_lshl_b32 s46, s23, 16"); e("s_lshl_b32 s47, s24, 14"); e("s_add_u32 s46, s46, s47")
    e("s_lshl_b32 s47, s20, 10"); e("s_add_u32 s46, s46, s47"); e("s_lshl_b32 s47, s22, 7"); e("s_add_u32 s46, s46, s47")
    e(f"s_add_u32 s46, s46, {FBOX}"); e("s_add_u32 s46, s18, s46"); e("s_addc_u32 s47, s19, 0")
    e("v_cmp_gt_u32 s[48:49], 8, v1")
    e(f"s_mov_b32 s50, {SPIN_MAX}")
    e("L_poll1:")
    e("global_load_dwordx4 v[40:43], v29, s[44:45] sc1")
    e("global_load_dwordx4 v[44:47], v29, s[44:45] offset:16 sc1")
    for s in range(4):
        e(f"global_load_dwordx4 v[{48+4*s}:{51+4*s}], v28, s[42:43] offset:{512*s} sc1")
    e("s_waitcnt vmcnt(4)")
    WF = 80
    for ct in range(2):
        for t in range(2):
            for h in range(2):
                r = WF + (ct*2+t)*4 + 2*h
                e(f"ds_read_b64_tr_b16 v[{r}:{r+1}], v31 offset:{t*2048 + h*256 + ct*32}")
    e("v_xor_b32 v36, s25, v41"); e("v_xor_b32 v37, s25, v43"); e("v_or_b32 v36, v36, v37")
    e("v_xor_b32 v37, s25, v45"); e("v_or_b32 v36, v36, v37"); e("v_xor_b32 v37, s25, v47"); e("v_or_b32 v36, v36, v37")
    e("v_max3_f32 v37, v40, v42, v44"); e("v_max_f32 v37, v37, v46")
    for s in range(4): e(f"v_sub_f32 v{40+2*s}, v{40+2*s}, v37")
    for s in range(4): e(f"v_exp_f32 v{40+2*s}, v{40+2*s}")
    e("s_nop 0")
    e("v_add_f32 v37, v40, v42"); e("v_add_f32 v38, v44, v46"); e("v_add_f32 v37, v37, v38")
    e("v_rcp_f32 v37, v37"); e("s_nop 0")
    for s in range(4): e(f"v_mul_f32 v{40+2*s}, v{40+2*s}, v37")
    e("s_waitcnt vmcnt(0)")
    for s in range(4):
        e(f"v_xor_b32 v37, s25, v{49+4*s}"); e(f"v_xor_b32 v38, s25, v{51+4*s}"); e("v_or3_b32 v36, v36, v37, v38")
    e("v_cmp_ne_u32 vcc, 0, v36")
    e("s_sub_u32 s50, s50, 1"); e("s_cbranch_scc1 L_poll1_done")
    e("s_cbranch_vccnz L_poll1")
    e("L_poll1_done:")
    stamp(7)
    e("v_mul_f32 v36, v40, v48"); e("v_mul_f32 v37, v40, v50")
    for s in range(1, 4):
        e(f"v_fmac_f32 v36, v{40+2*s}, v{48+4*s}"); e(f"v_fmac_f32 v37, v{40+2*s}, v{50+4*s}")
    e("v_cvt_pk_bf16_f32 v36, v36, v37")
    e(f"ds_write_b32 v30, v36 offset:{ABUF}")
    e("s_waitcnt lgkmcnt(0)")
    e("s_barrier")
    e(f"ds_read_b128 v[40:43], v33 offset:{ABUF}")
    e(f"ds_read_b128 v[44:47], v33 offset:{ABUF+64}")
    e("v_mov_b32 v57, s25"); e("v_mov_b32 v59, s25"); e("v_mov_b32 v61, s25"); e("v_mov_b32 v63, s25")
    e("s_waitcnt lgkmcnt(1)")
    e(f"v_mfma_f32_16x16x32_bf16 v[48:51], v[{WF}:{WF+3}], v[40:43], 0")
    e(f"v_mfma_f32_16x16x32_bf16 v[52:55], v[{WF+8}:{WF+11}], v[40:43], 0")
    e("s_waitcnt lgkmcnt(0)")
    e(f"v_mfma_f32_16x16x32_bf16 v[48:51], v[{WF+4}:{WF+7}], v[44:47], v[48:51]")
    e(f"v_mfma_f32_16x16x32_bf16 v[52:55], v[{WF+12}:{WF+15}], v[44:47], v[52:55]")
    e("s_nop 7")
    e("v_cndmask_b32 v56, v52, v48, s[48:49]"); e("v_cndmask_b32 v58, v53, v49, s[48:49]")
    e("v_cndmask_b32 v60, v54, v50, s[48:49]"); e("v_cndmask_b32 v62, v55, v51, s[48:49]")
    e("global_store_dwordx4 v34, v[56:59], s[46:47] sc1")
    e("global_store_dwordx4 v34, v[60:63], s[46:47] offset:64 sc1")
    stamp(8)
    if stamps:
        e("s_mov_b64 s[78:79], 0")
        e("s_add_u32 s24, s24, 1")
        e("s_branch L_stamps")
    e("s_endpgm")
    e("L_sync:")
    e("s_setprio 3")
    e("v_and_b32 v3, 7, v1"); e("v_lshlrev_b32 v4, 10, v3"); e("v_lshrrev_b32 v5, 3, v1"); e("v_lshl_add_u32 v4, v5, 6, v4"); e("v_lshl_add_u32 v4, v2, 4, v4")
    e("v_lshrrev_b32 v5, 1, v0"); e("v_lshlrev_b32 v5, 13, v5"); e("v_and_b32 v6, 1, v0"); e("v_lshl_add_u32 v5, v6, 4, v5")
    e("s_lshl_b32 s26, s20, 10"); e("s_lshl_b32 s27, s21, 5"); e("s_add_u32 s26, s26, s27")
    e("v_lshrrev_b32 v6, 2, v1"); e("v_lshl_add_u32 v6, v2, 3, v6"); e("v_lshlrev_b32 v6, 5, v6"); e("v_and_b32 v7, 3, v1"); e("v_lshl_add_u32 v6, v7, 3, v6")
    e(f"s_mov_b32 m0, {WQ_LDS}")
    e("s_waitcnt lgkmcnt(0)")
    stamp(1)
    e("s_add_u32 s30, s10, s26"); e("s_addc_u32 s31, s11, 0")
    XR = 16
    for u in range(8):
        for h in range(2):
            e(f"global_load_lds_dwordx4 v5, s[30:31] {ldw}")
            if not (u == 7 and h == 1):
                e(f"s_add_u32 s30, s30, {32*8192}"); e("s_addc_u32 s31, s31, 0")
                e("s_add_u32 m0, m0, 1024")
            if h == 0: e("s_nop 0")
        e(f"global_load_dwordx4 v[{XR+4*u}:{XR+4*u+3}], v4, s[4:5] offset:{128*u}")
    e("s_load_dword s25, s[18:19], 0")
    stamp(2)
    e("v_lshlrev_b32 v7, 11, v3"); e("v_lshl_add_u32 v7, v2, 4, v7")
    e("s_lshl_b32 s26, s20, 14"); e("s_lshl_b32 s27, s21, 6"); e("s_add_u32 s27, s27, s26"); e(f"s_add_u32 s27, s27, {QBOX}")
    e("s_add_u32 s32, s18, s27"); e("s_addc_u32 s33, s19, 0")
    e("s_lshl_b32 s27, s22, 11"); e("s_add_u32 s27, s27, s26"); e(f"s_add_u32 s27, s27, {QBOX}")
    e("s_add_u32 s34, s18, s27"); e("s_addc_u32 s35, s19, 0")
    e("v_lshlrev_b32 v8, 4, v0"); e("v_lshlrev_b32 v9, 3, v0")
    e("v_cmp_gt_u32 s[48:49], 8, v1")
    e("s_waitcnt lgkmcnt(0)")
    e("s_mov_b32 s51, s25")
    e("s_mul_i32 s25, s25, 0x9E3779B1"); e("s_add_u32 s25, s25, 0x7F4A7C15")
    WR = 48
    for u in range(8):
        e(f"s_waitcnt vmcnt({24 - 3*(u+1)})")
        for h2 in range(2):
            t = 2*u + h2
            for h in range(2):
                r = WR + 4*t + 2*h
                e(f"ds_read_b64_tr_b16 v[{r}:{r+1}], v6 offset:{WQ_LDS + t*1024 + h*128}")
        if u >= 1:
            uu = u - 1
            e("s_waitcnt lgkmcnt(4)")
            for h2 in range(2):
                t = 2*uu + h2; a = 112 + 4*h2
                c = "0" if uu == 0 else f"v[{a}:{a+3}]"
                e(f"v_mfma_f32_16x16x32_bf16 v[{a}:{a+3}], v[{WR+4*t}:{WR+4*t+3}], v[{XR+4*uu}:{XR+4*uu+3}], {c}")
    e("s_waitcnt lgkmcnt(0)")
    for h2 in range(2):
        t = 14 + h2; a = 112 + 4*h2
        e(f"v_mfma_f32_16x16x32_bf16 v[{a}:{a+3}], v[{WR+4*t}:{WR+4*t+3}], v[{XR+28}:{XR+31}], v[{a}:{a+3}]")
    e("v_mov_b32 v121, s25"); e("v_mov_b32 v123, s25")
    e("s_nop 7")
    for r in range(4):
        e(f"v_add_f32_dpp v{112+r}, v{116+r}, v{112+r} row_ror:8 row_mask:0xf bank_mask:0xf")
    e("v_cvt_pk_bf16_f32 v120, v112, v113"); e("v_cvt_pk_bf16_f32 v122, v114, v115")
    e("s_mov_b64 exec, s[48:49]")
    e("global_store_dwordx4 v7, v[120:123], s[32:33] sc1")
    e("s_mov_b64 exec, -1")
    stamp(3)
    e(f"s_mov_b32 s50, {SPIN_MAX}")
    e("L_pollq:")
    e("global_load_dwordx4 v[16:19], v8, s[34:35] sc1")
    e("global_load_dwordx4 v[20:23], v8, s[34:35] offset:1024 sc1")
    e("s_waitcnt vmcnt(0)")
    e("v_xor_b32 v24, s25, v17"); e("v_xor_b32 v25, s25, v19"); e("v_xor_b32 v26, s25, v21"); e("v_xor_b32 v27, s25, v23")
    e("v_or3_b32 v24, v24, v25, v26"); e("v_or_b32 v24, v24, v27")
    e("v_cmp_ne_u32 vcc, 0, v24")
    e("s_sub_u32 s50, s50, 1"); e("s_cbranch_scc1 L_pollq_done")
    e("s_cbranch_vccnz L_pollq")
    e("L_pollq_done:")
    e("v_mov_b32 v17, v18"); e("v_mov_b32 v21, v22")
    e(f"ds_write_b64 v9, v[16:17] offset:{QBUF}")
    e(f"ds_write_b64 v9, v[20:21] offset:{QBUF+512}")
    e("s_waitcnt lgkmcnt(0)")
    stamp(4)
    e("s_barrier")
    e("v_and_b32 v10, 3, v0"); e("v_lshlrev_b32 v11, 8, v10"); e("v_lshlrev_b32 v10, 5, v10")
    e("s_lshl_b32 s26, s20, 10"); e("s_lshl_b32 s27, s21, 3"); e("s_add_u32 s26, s26, s27"); e(f"s_add_u32 s26, s26, {SBOX}")
    e("s_add_u32 s36, s18, s26"); e("s_addc_u32 s37, s19, 0")
    e("v_mov_b32 v31, s25")
    e("s_barrier")
    e(f"ds_read_b128 v[16:19], v10 offset:{STATS}")
    e(f"ds_read_b128 v[20:23], v10 offset:{STATS+16}")
    e("s_waitcnt lgkmcnt(0)")
    e("v_max3_f32 v24, v16, v18, v20"); e("v_max_f32 v24, v24, v22")
    for w in range(4): e(f"v_sub_f32 v{16+2*w}, v{16+2*w}, v24")
    for w in range(4): e(f"v_exp_f32 v{16+2*w}, v{16+2*w}")
    e("s_nop 0")
    e("v_mul_f32 v25, v16, v17")
    for w in range(1, 4): e(f"v_fmac_f32 v25, v{16+2*w}, v{17+2*w}")
    e("v_log_f32 v25, v25"); e("s_nop 0")
    e("v_add_f32 v30, v24, v25")
    e("s_mov_b64 exec, 15")
    e("global_store_dwordx2 v11, v[30:31], s[36:37] sc1")
    e("s_mov_b64 exec, -1")
    stamp(5)
    e("s_lshl_b32 s26, s2, 13"); e(f"s_add_u32 s26, s26, {FBOX}"); e("s_add_u32 s38, s18, s26"); e("s_addc_u32 s39, s19, 0")
    e("s_add_u32 s40, s38, 4096"); e("s_addc_u32 s41, s39, 0")
    e("v_and_b32 v12, 3, v0"); e("v_lshlrev_b32 v12, 3, v12"); e("v_bfe_u32 v13, v0, 2, 1"); e("v_lshl_add_u32 v12, v13, 2, v12")
    e("s_lshl_b32 s26, s2, 5"); e("s_add_u32 s42, s14, s26"); e("s_addc_u32 s43, s15, 0")
    e("s_barrier")
    e("s_barrier")
    stamp(6)
    e(f"s_mov_b32 s50, {SPIN_MAX}")
    e("L_poll2:")
    for u in range(8):
        sb = "s[38:39]" if u < 4 else "s[40:41]"
        e(f"global_load_dwordx4 v[{32+4*u}:{35+4*u}], v8, {sb} offset:{(u%4)*1024} sc1")
    e("s_waitcnt vmcnt(0)")
    e("v_xor_b32 v24, s25, v33"); e("v_xor_b32 v25, s25, v35"); e("v_or_b32 v24, v24, v25")
    for u in range(1, 8):
        e(f"v_xor_b32 v25, s25, v{33+4*u}"); e(f"v_xor_b32 v26, s25, v{35+4*u}"); e("v_or3_b32 v24, v24, v25, v26")
    e("v_cmp_ne_u32 vcc, 0, v24")
    e("s_sub_u32 s50, s50, 1"); e("s_cbranch_scc1 L_poll2_done")
    e("s_cbranch_vccnz L_poll2")
    e("L_poll2_done:")
    stamp(7)
    for u in (1, 3, 5, 7):
        e(f"v_add_f32 v{32+4*(u-1)}, v{32+4*(u-1)}, v{32+4*u}"); e(f"v_add_f32 v{34+4*(u-1)}, v{34+4*(u-1)}, v{34+4*u}")
    for u in (2, 6):
        e(f"v_add_f32 v{32+4*(u-2)}, v{32+4*(u-2)}, v{32+4*u}"); e(f"v_add_f32 v{34+4*(u-2)}, v{34+4*(u-2)}, v{34+4*u}")
    e("v_add_f32 v32, v32, v48"); e("v_add_f32 v34, v34, v50")
    e("s_nop 1")
    e("v_add_f32_dpp v32, v32, v32 row_ror:8 row_mask:0xf bank_mask:0xf"); e("v_add_f32_dpp v34, v34, v34 row_ror:8 row_mask:0xf bank_mask:0xf")
    e("v_mov_b32 v33, v32"); e("v_mov_b32 v35, v34"); e("s_nop 1")
    e("v_permlane16_swap_b32 v32, v33"); e("v_permlane16_swap_b32 v34, v35")
    e("v_add_f32 v32, v32, v33"); e("v_add_f32 v34, v34, v35")
    e("v_mov_b32 v33, v32"); e("v_mov_b32 v35, v34"); e("s_nop 1")
    e("v_permlane32_swap_b32 v32, v33"); e("v_permlane32_swap_b32 v34, v35")
    e("v_add_f32 v32, v32, v33"); e("v_add_f32 v34, v34, v35")
    e("v_cvt_pk_bf16_f32 v32, v32, v34")
    e("s_mov_b64 exec, 0xff")
    e("global_store_dword v12, v32, s[42:43]")
    e("s_cmp_lg_u32 s2, 0"); e("s_cbranch_scc1 L_noepoch")
    e("s_add_u32 s51, s51, 1"); e("v_mov_b32 v33, s51"); e("v_mov_b32 v34, 0")
    e("s_mov_b64 exec, 1")
    e("global_store_dword v34, v33, s[18:19] sc1")
    e("L_noepoch:")
    e("s_mov_b64 exec, -1")
    stamp(8)
    if stamps:
        e("s_waitcnt vmcnt(0)")
        e("s_memrealtime s[78:79]")
        e("L_stamps:")
        e("s_waitcnt lgkmcnt(0)")
        e("s_mul_i32 s52, s2, 5"); e("s_add_u32 s52, s52, s24"); e("s_mul_i32 s52, s52, 80")
        e(f"s_add_u32 s52, s52, {STAMP}")
        e("s_add_u32 s54, s18, s52"); e("s_addc_u32 s55, s19, 0")
        e("v_mov_b32 v1, 0")
        for j in range(10):
            e(f"v_mov_b32 v2, s{60+2*j}"); e(f"v_mov_b32 v3, s{61+2*j}")
            e(f"global_store_dwordx2 v1, v[2:3], s[54:55] offset:{8*j}")
            e("s_nop 1")
    e("L_end:")
    e("s_endpgm")
    e('.section .rodata,"a"'); e(".p2align 6"); e(f".amdhsa_kernel {NAME}")
    e("  .amdhsa_next_free_vgpr 208"); e("  .amdhsa_next_free_sgpr 96"); e("  .amdhsa_accum_offset 208")
    e("  .amdhsa_group_segment_fixed_size 0"); e("  .amdhsa_kernarg_size 64"); e("  .amdhsa_user_sgpr_count 2")
    e("  .amdhsa_user_sgpr_kernarg_segment_ptr 1"); e("  .amdhsa_system_sgpr_workgroup_id_x 1"); e(".end_amdhsa_kernel")
    return "\n".join(L) + "\n"

if __name__ == "__main__":
    open("v1_nt.s", "w").write(gen(ld="nt", ldw="nt"))
    open("v1_pl.s", "w").write(gen(ld="", ldw=""))
    open("v1_nt_st.s", "w").write(gen(ld="nt", ldw="nt", stamps=True))
```

```python
import sys, math, struct
NAME = "standalone__sliding_block_cached__decode_kernel"
HDR = open("standalone__sliding_block_cached__decode.s.ref").read().split("; Override launch")[0]

def f32bits(x): return struct.unpack("<I", struct.pack("<f", x))[0]

EPOCH = 0
QBOX = 0x1000
SBOX = 0x40000
OBOX = 0x80000
FBOX = 0x200000
STAMP = 128 << 20
WQ_LDS = 0
WO_LDS = 16384
OPART = 32768
QBUF = 40960
STATS = 41984
ABUF = 42240
LDS_BYTES = 43264
SPIN_MAX = 20000

def gen(ld="nt", stamps=False, ldw="nt", dbgst=False):
    L = []
    e = L.append
    nst = [0]
    def stamp(i):
        if stamps: e(f"s_memrealtime s[{60+2*i}:{61+2*i}]")
    e(HDR.rstrip())
    e(f"; @launch grid=(256,1,1) block=(320,1,1) lds={LDS_BYTES}")
    e('.amdgcn_target "amdgcn-amd-amdhsa--gfx950"')
    e(".text"); e(f".globl {NAME}"); e(".p2align 8"); e(f".type {NAME},@function"); e(f"{NAME}:")
    stamp(0)
    e("s_cmp_ge_u32 s2, 256"); e("s_cbranch_scc1 L_end")
    e("s_load_dwordx16 s[4:19], s[0:1], 0")
    e("v_lshrrev_b32 v1, 6, v0")
    e("v_and_b32 v0, 63, v0")
    e("s_and_b32 s20, s2, 7")
    e("v_readfirstlane_b32 s24, v1")
    e("s_lshr_b32 s21, s2, 3")
    e("s_lshr_b32 s22, s21, 2")
    e("s_and_b32 s23, s21, 3")
    e("v_and_b32 v1, 15, v0")
    e("v_lshrrev_b32 v2, 4, v0")
    e("s_cmp_eq_u32 s24, 0")
    e("s_cbranch_scc1 L_sync")
    e("s_sub_u32 s24, s24, 1")
    e("s_lshl_b32 s26, s22, 3"); e("s_add_u32 s26, s26, s20"); e("s_lshl_b32 s26, s26, 20")
    e("s_lshl_b32 s27, s23, 16"); e("s_add_u32 s26, s26, s27")
    e("s_lshl_b32 s27, s24, 14"); e("s_add_u32 s26, s26, s27")
    e(f"s_add_u32 s26, s26, {3072*256}")
    e("v_and_b32 v3, 3, v1"); e("v_lshlrev_b32 v3, 10, v3")
    e("v_lshrrev_b32 v4, 2, v1"); e("v_lshl_add_u32 v3, v4, 8, v3"); e("v_lshl_add_u32 v3, v2, 4, v3")
    e("v_lshlrev_b32 v4, 4, v0")
    e("v_lshrrev_b32 v5, 2, v0"); e("v_lshlrev_b32 v5, 10, v5"); e("v_and_b32 v6, 3, v0"); e("v_lshl_add_u32 v5, v6, 4, v5")
    e("s_lshl_b32 s28, s20, 19"); e("s_lshl_b32 s29, s22, 16"); e("s_add_u32 s28, s28, s29")
    e("s_lshl_b32 s29, s23, 8"); e("s_add_u32 s28, s28, s29"); e("s_lshl_b32 s29, s24, 6"); e("s_add_u32 s28, s28, s29")
    e("s_waitcnt lgkmcnt(0)")
    stamp(1)
    e("s_add_u32 s30, s6, s26"); e("s_addc_u32 s31, s7, 0")
    e("s_add_u32 s32, s8, s26"); e("s_addc_u32 s33, s9, 0")
    KR = 16; VR = 80
    for T in range(4):
        for t in range(4):
            r = KR + (T*4+t)*4
            e(f"global_load_dwordx4 v[{r}:{r+3}], v3, s[30:31] offset:{t*64} {ld}")
        if T < 3:
            e("s_add_u32 s30, s30, 4096"); e("s_addc_u32 s31, s31, 0")
    e("s_load_dword s25, s[18:19], 0")
    for i in range(16):
        r = VR + i*4
        e(f"global_load_dwordx4 v[{r}:{r+3}], v4, s[32:33] offset:{(i%4)*1024} {ld}")
        if i % 4 == 3 and i < 15:
            e("s_add_u32 s32, s32, 4096"); e("s_addc_u32 s33, s33, 0")
    e("s_add_u32 s34, s12, s28"); e("s_addc_u32 s35, s13, 0")
    e("s_lshl_b32 s29, s24, 12"); e(f"s_add_u32 s29, s29, {WO_LDS}")
    for i in range(4):
        e(f"s_add_u32 m0, s29, {i*1024}")
        e("s_nop 0")
        e(f"global_load_lds_dwordx4 v5, s[34:35] {ldw}")
        if i < 3:
            e("s_add_u32 s34, s34, 16384"); e("s_addc_u32 s35, s35, 0")
    stamp(2)
    e("s_waitcnt lgkmcnt(0)")
    e("s_mul_i32 s25, s25, 0x9E3779B1"); e("s_add_u32 s25, s25, 0x7F4A7C15")
    e("v_lshrrev_b32 v6, 2, v1"); e("v_lshlrev_b32 v7, 8, v6"); e("v_lshl_add_u32 v7, v2, 4, v7")
    e(f"s_mov_b32 s36, {f32bits(128**-0.5 * math.log2(math.e))}")
    e("s_mov_b32 s37, 0x05040100"); e("s_mov_b32 s38, 0x07060302")
    e("s_barrier")
    QF = 144
    for t in range(4):
        e(f"ds_read_b128 v[{QF+4*t}:{QF+4*t+3}], v7 offset:{QBUF + t*64}")
    stamp(3)
    SR = 160
    e("s_waitcnt lgkmcnt(0)")
    for T in range(4):
        e(f"s_waitcnt vmcnt({20 + 16 - 4*(T+1)})")
        for t in range(4):
            r = KR + (T*4+t)*4
            c = "0" if t == 0 else f"v[{SR+4*T}:{SR+4*T+3}]"
            e(f"v_mfma_f32_16x16x32_bf16 v[{SR+4*T}:{SR+4*T+3}], v[{r}:{r+3}], v[{QF+4*t}:{QF+4*t+3}], {c}")
    e("s_nop 7")
    e(f"v_max3_f32 v8, v{SR}, v{SR+1}, v{SR+2}")
    for i in range(3, 15, 2):
        e(f"v_max3_f32 v8, v8, v{SR+i}, v{SR+i+1}")
    e(f"v_max_f32 v8, v8, v{SR+15}")
    e("v_mov_b32 v9, v8"); e("s_nop 1")
    e("v_permlane16_swap_b32 v8, v9"); e("v_max_f32 v8, v8, v9")
    e("v_mov_b32 v9, v8"); e("s_nop 1")
    e("v_permlane32_swap_b32 v8, v9"); e("v_max_f32 v8, v8, v9")
    e("v_mul_f32 v8, s36, v8")
    for i in range(16):
        e(f"v_fma_f32 v{SR+i}, v{SR+i}, s36, -v8")
    for i in range(16):
        e(f"v_exp_f32 v{SR+i}, v{SR+i}")
    e("s_nop 0")
    e(f"v_add_f32 v9, v{SR}, v{SR+1}"); e(f"v_add_f32 v10, v{SR+2}, v{SR+3}")
    for i in range(4, 16, 2):
        e(f"v_add_f32 v9, v9, v{SR+i}"); e(f"v_add_f32 v10, v10, v{SR+i+1}")
    e("v_add_f32 v9, v9, v10")
    e("v_mov_b32 v10, v9"); e("s_nop 1")
    e("v_permlane16_swap_b32 v9, v10"); e("v_add_f32 v9, v9, v10")
    e("v_mov_b32 v10, v9"); e("s_nop 1")
    e("v_permlane32_swap_b32 v9, v10"); e("v_add_f32 v9, v9, v10")
    e("v_lshlrev_b32 v10, 5, v6"); e("s_lshl_b32 s39, s24, 3"); e("v_add_u32 v11, s39, v10")
    e(f"ds_write_b64 v11, v[8:9] offset:{STATS}")
    e("s_waitcnt lgkmcnt(0)")
    e("s_barrier")
    e(f"ds_read_b128 v[{QF}:{QF+3}], v10 offset:{STATS}")
    e(f"ds_read_b128 v[{QF+4}:{QF+7}], v10 offset:{STATS+16}")
    e("s_waitcnt lgkmcnt(0)")
    e(f"v_max3_f32 v11, v{QF}, v{QF+2}, v{QF+4}"); e(f"v_max_f32 v11, v11, v{QF+6}")
    for w in range(4):
        e(f"v_sub_f32 v{QF+2*w}, v{QF+2*w}, v11")
    e("v_sub_f32 v8, v8, v11")
    for w in range(4):
        e(f"v_exp_f32 v{QF+2*w}, v{QF+2*w}")
    e("v_exp_f32 v8, v8")
    e(f"v_mul_f32 v12, v{QF}, v{QF+1}")
    for w in range(1, 4):
        e(f"v_fmac_f32 v12, v{QF+2*w}, v{QF+2*w+1}")
    e("v_rcp_f32 v12, v12"); e("s_nop 0")
    e("v_mul_f32 v8, v8, v12")
    for i in range(16):
        e(f"v_mul_f32 v{SR+i}, v{SR+i}, v8")
    PF = 144
    for i in range(8):
        e(f"v_cvt_pk_bf16_f32 v{PF+i}, v{SR+2*i}, v{SR+2*i+1}")
    stamp(4)
    OA = 176
    TP = KR
    for kb in range(2):
        e(f"s_waitcnt vmcnt({4 + 8*(1-kb)})")
        for j in range(8):
            for u in range(4):
                lo = VR + (kb*8 + 2*u)*4 + (j >> 1); hi = VR + (kb*8 + 2*u+1)*4 + (j >> 1)
                e(f"v_perm_b32 v{TP + kb*32 + j*4 + u}, v{hi}, v{lo}, s{37 + (j&1)}")
            if j >= 1:
                jj = j-1
                c = "0" if kb == 0 else f"v[{OA+4*jj}:{OA+4*jj+3}]"
                e(f"v_mfma_f32_16x16x32_bf16 v[{OA+4*jj}:{OA+4*jj+3}], v[{PF+4*kb}:{PF+4*kb+3}], v[{TP+kb*32+jj*4}:{TP+kb*32+jj*4+3}], {c}")
        e("s_nop 1")
        jj = 7
        c = "0" if kb == 0 else f"v[{OA+4*jj}:{OA+4*jj+3}]"
        e(f"v_mfma_f32_16x16x32_bf16 v[{OA+4*jj}:{OA+4*jj+3}], v[{PF+4*kb}:{PF+4*kb+3}], v[{TP+kb*32+jj*4}:{TP+kb*32+jj*4+3}], {c}")
    stamp(5)
    e("v_lshlrev_b32 v10, 2, v0"); e("s_lshl_b32 s39, s24, 11"); e(f"s_add_u32 s39, s39, {OPART}"); e("v_add_u32 v11, s39, v10")
    e("v_lshrrev_b32 v12, 3, v1"); e("v_lshl_add_u32 v12, v2, 1, v12"); e("v_lshlrev_b32 v12, 14, v12")
    e("v_and_b32 v13, 7, v1"); e("v_lshl_add_u32 v12, v13, 4, v12")
    e("s_lshl_b32 s40, s20, 17"); e("s_lshl_b32 s41, s21, 9"); e("s_add_u32 s40, s40, s41"); e("s_lshl_b32 s41, s24, 7"); e("s_add_u32 s40, s40, s41")
    e(f"s_add_u32 s40, s40, {OBOX}"); e("s_add_u32 s40, s18, s40"); e("s_addc_u32 s41, s19, 0")
    for jp in range(4):
        e(f"ds_write2st64_b32 v11, v{OA+8*jp}, v{OA+8*jp+4} offset0:{2*jp} offset1:{2*jp+1}")
    e("s_waitcnt lgkmcnt(0)")
    e("s_barrier")
    e("s_lshl_b32 s39, s24, 9"); e(f"s_add_u32 s39, s39, {OPART}"); e("v_add_u32 v11, s39, v10")
    for w in range(4):
        e(f"ds_read2st64_b32 v[{16+2*w}:{17+2*w}], v11 offset0:{8*w} offset1:{8*w+1}")
    e("v_mov_b32 v25, s25"); e("v_mov_b32 v27, s25")
    e("s_waitcnt lgkmcnt(0)")
    e("v_add_f32 v16, v16, v18"); e("v_add_f32 v20, v20, v22"); e("v_add_f32 v17, v17, v19"); e("v_add_f32 v21, v21, v23")
    e("v_add_f32 v24, v16, v20"); e("v_add_f32 v26, v17, v21")
    e("global_store_dwordx4 v12, v[24:27], s[40:41] sc1")
    stamp(6)
    e("v_lshrrev_b32 v14, 5, v0"); e("v_and_b32 v15, 31, v0")
    e("v_lshlrev_b32 v28, 11, v14"); e("v_lshl_add_u32 v28, v15, 4, v28")
    e("s_lshl_b32 s42, s20, 17"); e("s_lshl_b32 s43, s22, 14"); e("s_add_u32 s42, s42, s43"); e("s_lshl_b32 s43, s24, 12"); e("s_add_u32 s42, s42, s43")
    e(f"s_add_u32 s42, s42, {OBOX}"); e("s_add_u32 s42, s18, s42"); e("s_addc_u32 s43, s19, 0")
    e("v_lshlrev_b32 v29, 5, v14")
    e("s_lshl_b32 s44, s20, 10"); e("s_lshr_b32 s45, s22, 1"); e("s_lshl_b32 s45, s45, 8"); e("s_add_u32 s44, s44, s45"); e("s_lshl_b32 s45, s24, 6"); e("s_add_u32 s44, s44, s45")
    e(f"s_add_u32 s44, s44, {SBOX}"); e("s_add_u32 s44, s18, s44"); e("s_addc_u32 s45, s19, 0")
    e("v_and_b32 v30, 7, v15"); e("v_lshlrev_b32 v30, 4, v30"); e("v_lshrrev_b32 v31, 3, v15"); e("v_lshl_add_u32 v30, v31, 2, v30")
    e("v_lshl_add_u32 v30, v14, 7, v30"); e("s_lshl_b32 s39, s24, 8"); e("v_add_u32 v30, s39, v30")
    e("v_lshrrev_b32 v31, 2, v1"); e("v_lshl_add_u32 v31, v2, 3, v31"); e("v_lshlrev_b32 v31, 6, v31"); e("v_and_b32 v32, 3, v1"); e("v_lshl_add_u32 v31, v32, 3, v31")
    e("v_add_u32 v31, s29, v31")
    e("v_and_b32 v32, 7, v1"); e("v_lshlrev_b32 v33, 7, v32"); e("v_lshl_add_u32 v33, v2, 4, v33")
    e("v_lshlrev_b32 v34, 18, v32"); e("v_lshrrev_b32 v35, 3, v1"); e("v_lshl_add_u32 v34, v35, 13, v34"); e("v_lshl_add_u32 v34, v2, 4, v34")
    e("s_lshl_b32 s46, s23, 16"); e("s_lshl_b32 s47, s24, 14"); e("s_add_u32 s46, s46, s47")
    e("s_lshl_b32 s47, s20, 10"); e("s_add_u32 s46, s46, s47"); e("s_lshl_b32 s47, s22, 7"); e("s_add_u32 s46, s46, s47")
    e(f"s_add_u32 s46, s46, {FBOX}"); e("s_add_u32 s46, s18, s46"); e("s_addc_u32 s47, s19, 0")
    e("v_cmp_gt_u32 s[48:49], 8, v1")
    e(f"s_mov_b32 s50, {SPIN_MAX}")
    e("L_poll1:")
    e("global_load_dwordx4 v[40:43], v29, s[44:45] sc1")
    e("global_load_dwordx4 v[44:47], v29, s[44:45] offset:16 sc1")
    for s in range(4):
        e(f"global_load_dwordx4 v[{48+4*s}:{51+4*s}], v28, s[42:43] offset:{512*s} sc1")
    e("s_waitcnt vmcnt(4)")
    WF = 80
    for ct in range(2):
        for t in range(2):
            for h in range(2):
                r = WF + (ct*2+t)*4 + 2*h
                e(f"ds_read_b64_tr_b16 v[{r}:{r+1}], v31 offset:{t*2048 + h*256 + ct*32}")
    e("v_xor_b32 v36, s25, v41"); e("v_xor_b32 v37, s25, v43"); e("v_or_b32 v36, v36, v37")
    e("v_xor_b32 v37, s25, v45"); e("v_or_b32 v36, v36, v37"); e("v_xor_b32 v37, s25, v47"); e("v_or_b32 v36, v36, v37")
    e("v_max3_f32 v37, v40, v42, v44"); e("v_max_f32 v37, v37, v46")
    for s in range(4): e(f"v_sub_f32 v{40+2*s}, v{40+2*s}, v37")
    for s in range(4): e(f"v_exp_f32 v{40+2*s}, v{40+2*s}")
    e("s_nop 0")
    e("v_add_f32 v37, v40, v42"); e("v_add_f32 v38, v44, v46"); e("v_add_f32 v37, v37, v38")
    e("v_rcp_f32 v37, v37"); e("s_nop 0")
    for s in range(4): e(f"v_mul_f32 v{40+2*s}, v{40+2*s}, v37")
    e("s_waitcnt vmcnt(0)")
    for s in range(4):
        e(f"v_xor_b32 v37, s25, v{49+4*s}"); e(f"v_xor_b32 v38, s25, v{51+4*s}"); e("v_or3_b32 v36, v36, v37, v38")
    e("v_cmp_ne_u32 vcc, 0, v36")
    e("s_sub_u32 s50, s50, 1"); e("s_cbranch_scc1 L_poll1_done")
    e("s_cbranch_vccnz L_poll1")
    e("L_poll1_done:")
    stamp(7)
    e("v_mul_f32 v36, v40, v48"); e("v_mul_f32 v37, v40, v50")
    for s in range(1, 4):
        e(f"v_fmac_f32 v36, v{40+2*s}, v{48+4*s}"); e(f"v_fmac_f32 v37, v{40+2*s}, v{50+4*s}")
    e("v_cvt_pk_bf16_f32 v36, v36, v37")
    e(f"ds_write_b32 v30, v36 offset:{ABUF}")
    e("s_waitcnt lgkmcnt(0)")
    e("s_barrier")
    e(f"ds_read_b128 v[40:43], v33 offset:{ABUF}")
    e(f"ds_read_b128 v[44:47], v33 offset:{ABUF+64}")
    e("v_mov_b32 v57, s25"); e("v_mov_b32 v59, s25"); e("v_mov_b32 v61, s25"); e("v_mov_b32 v63, s25")
    e("s_waitcnt lgkmcnt(1)")
    e(f"v_mfma_f32_16x16x32_bf16 v[48:51], v[{WF}:{WF+3}], v[40:43], 0")
    e(f"v_mfma_f32_16x16x32_bf16 v[52:55], v[{WF+8}:{WF+11}], v[40:43], 0")
    e("s_waitcnt lgkmcnt(0)")
    e(f"v_mfma_f32_16x16x32_bf16 v[48:51], v[{WF+4}:{WF+7}], v[44:47], v[48:51]")
    e(f"v_mfma_f32_16x16x32_bf16 v[52:55], v[{WF+12}:{WF+15}], v[44:47], v[52:55]")
    e("s_nop 7")
    e("v_cndmask_b32 v56, v52, v48, s[48:49]"); e("v_cndmask_b32 v58, v53, v49, s[48:49]")
    e("v_cndmask_b32 v60, v54, v50, s[48:49]"); e("v_cndmask_b32 v62, v55, v51, s[48:49]")
    e("global_store_dwordx4 v34, v[56:59], s[46:47] sc1")
    e("global_store_dwordx4 v34, v[60:63], s[46:47] offset:64 sc1")
    stamp(8)
    if stamps:
        e("s_mov_b64 s[78:79], 0")
        e("s_add_u32 s24, s24, 1")
        e("s_branch L_stamps")
    e("s_endpgm")
    e("L_sync:")
    e("s_setprio 3")
    e("v_and_b32 v3, 7, v1"); e("v_lshlrev_b32 v4, 10, v3"); e("v_lshrrev_b32 v5, 3, v1"); e("v_lshl_add_u32 v4, v5, 6, v4"); e("v_lshl_add_u32 v4, v2, 4, v4")
    e("v_lshrrev_b32 v5, 1, v0"); e("v_lshlrev_b32 v5, 13, v5"); e("v_and_b32 v6, 1, v0"); e("v_lshl_add_u32 v5, v6, 4, v5")
    e("s_lshl_b32 s26, s20, 10"); e("s_lshl_b32 s27, s21, 5"); e("s_add_u32 s26, s26, s27")
    e("v_lshrrev_b32 v6, 2, v1"); e("v_lshl_add_u32 v6, v2, 3, v6"); e("v_lshlrev_b32 v6, 5, v6"); e("v_and_b32 v7, 3, v1"); e("v_lshl_add_u32 v6, v7, 3, v6")
    e(f"s_mov_b32 m0, {WQ_LDS}")
    e("s_waitcnt lgkmcnt(0)")
    stamp(1)
    e("s_add_u32 s30, s10, s26"); e("s_addc_u32 s31, s11, 0")
    XR = 16
    for u in range(8):
        for h in range(2):
            e(f"global_load_lds_dwordx4 v5, s[30:31] {ldw}")
            if not (u == 7 and h == 1):
                e(f"s_add_u32 s30, s30, {32*8192}"); e("s_addc_u32 s31, s31, 0")
                e("s_add_u32 m0, m0, 1024")
            if h == 0: e("s_nop 0")
        e(f"global_load_dwordx4 v[{XR+4*u}:{XR+4*u+3}], v4, s[4:5] offset:{128*u}")
    e("s_load_dword s25, s[18:19], 0")
    stamp(2)
    e("v_lshlrev_b32 v7, 11, v3"); e("v_lshl_add_u32 v7, v2, 4, v7")
    e("s_lshl_b32 s26, s20, 14"); e("s_lshl_b32 s27, s21, 6"); e("s_add_u32 s27, s27, s26"); e(f"s_add_u32 s27, s27, {QBOX}")
    e("s_add_u32 s32, s18, s27"); e("s_addc_u32 s33, s19, 0")
    e("s_lshl_b32 s27, s22, 11"); e("s_add_u32 s27, s27, s26"); e(f"s_add_u32 s27, s27, {QBOX}")
    e("s_add_u32 s34, s18, s27"); e("s_addc_u32 s35, s19, 0")
    e("v_lshlrev_b32 v8, 4, v0"); e("v_lshlrev_b32 v9, 3, v0")
    e("v_cmp_gt_u32 s[48:49], 8, v1")
    e("s_waitcnt lgkmcnt(0)")
    e("s_mov_b32 s51, s25")
    e("s_mul_i32 s25, s25, 0x9E3779B1"); e("s_add_u32 s25, s25, 0x7F4A7C15")
    WR = 48
    for u in range(8):
        e(f"s_waitcnt vmcnt({24 - 3*(u+1)})")
        for h2 in range(2):
            t = 2*u + h2
            for h in range(2):
                r = WR + 4*t + 2*h
                e(f"ds_read_b64_tr_b16 v[{r}:{r+1}], v6 offset:{WQ_LDS + t*1024 + h*128}")
        if u >= 1:
            uu = u - 1
            e("s_waitcnt lgkmcnt(4)")
            for h2 in range(2):
                t = 2*uu + h2; a = 112 + 4*h2
                c = "0" if uu == 0 else f"v[{a}:{a+3}]"
                e(f"v_mfma_f32_16x16x32_bf16 v[{a}:{a+3}], v[{WR+4*t}:{WR+4*t+3}], v[{XR+4*uu}:{XR+4*uu+3}], {c}")
    e("s_waitcnt lgkmcnt(0)")
    for h2 in range(2):
        t = 14 + h2; a = 112 + 4*h2
        e(f"v_mfma_f32_16x16x32_bf16 v[{a}:{a+3}], v[{WR+4*t}:{WR+4*t+3}], v[{XR+28}:{XR+31}], v[{a}:{a+3}]")
    e("v_mov_b32 v121, s25"); e("v_mov_b32 v123, s25")
    e("s_nop 7")
    for r in range(4):
        e(f"v_add_f32_dpp v{112+r}, v{116+r}, v{112+r} row_ror:8 row_mask:0xf bank_mask:0xf")
    e("v_cvt_pk_bf16_f32 v120, v112, v113"); e("v_cvt_pk_bf16_f32 v122, v114, v115")
    e("s_mov_b64 exec, s[48:49]")
    e("global_store_dwordx4 v7, v[120:123], s[32:33] sc1")
    e("s_mov_b64 exec, -1")
    stamp(3)
    e(f"s_mov_b32 s50, {SPIN_MAX}")
    e("L_pollq:")
    e("global_load_dwordx4 v[16:19], v8, s[34:35] sc1")
    e("global_load_dwordx4 v[20:23], v8, s[34:35] offset:1024 sc1")
    e("s_waitcnt vmcnt(0)")
    e("v_xor_b32 v24, s25, v17"); e("v_xor_b32 v25, s25, v19"); e("v_xor_b32 v26, s25, v21"); e("v_xor_b32 v27, s25, v23")
    e("v_or3_b32 v24, v24, v25, v26"); e("v_or_b32 v24, v24, v27")
    e("v_cmp_ne_u32 vcc, 0, v24")
    e("s_sub_u32 s50, s50, 1"); e("s_cbranch_scc1 L_pollq_done")
    e("s_cbranch_vccnz L_pollq")
    e("L_pollq_done:")
    e("v_mov_b32 v17, v18"); e("v_mov_b32 v21, v22")
    e(f"ds_write_b64 v9, v[16:17] offset:{QBUF}")
    e(f"ds_write_b64 v9, v[20:21] offset:{QBUF+512}")
    e("s_waitcnt lgkmcnt(0)")
    stamp(4)
    e("s_barrier")
    e("v_and_b32 v10, 3, v0"); e("v_lshlrev_b32 v11, 8, v10"); e("v_lshlrev_b32 v10, 5, v10")
    e("s_lshl_b32 s26, s20, 10"); e("s_lshl_b32 s27, s21, 3"); e("s_add_u32 s26, s26, s27"); e(f"s_add_u32 s26, s26, {SBOX}")
    e("s_add_u32 s36, s18, s26"); e("s_addc_u32 s37, s19, 0")
    e("v_mov_b32 v31, s25")
    e("s_barrier")
    e(f"ds_read_b128 v[16:19], v10 offset:{STATS}")
    e(f"ds_read_b128 v[20:23], v10 offset:{STATS+16}")
    e("s_waitcnt lgkmcnt(0)")
    e("v_max3_f32 v24, v16, v18, v20"); e("v_max_f32 v24, v24, v22")
    for w in range(4): e(f"v_sub_f32 v{16+2*w}, v{16+2*w}, v24")
    for w in range(4): e(f"v_exp_f32 v{16+2*w}, v{16+2*w}")
    e("s_nop 0")
    e("v_mul_f32 v25, v16, v17")
    for w in range(1, 4): e(f"v_fmac_f32 v25, v{16+2*w}, v{17+2*w}")
    e("v_log_f32 v25, v25"); e("s_nop 0")
    e("v_add_f32 v30, v24, v25")
    e("s_mov_b64 exec, 15")
    e("global_store_dwordx2 v11, v[30:31], s[36:37] sc1")
    e("s_mov_b64 exec, -1")
    stamp(5)
    e("s_lshl_b32 s26, s2, 13"); e(f"s_add_u32 s26, s26, {FBOX}"); e("s_add_u32 s38, s18, s26"); e("s_addc_u32 s39, s19, 0")
    e("s_add_u32 s40, s38, 4096"); e("s_addc_u32 s41, s39, 0")
    e("v_and_b32 v12, 3, v0"); e("v_lshlrev_b32 v12, 3, v12"); e("v_bfe_u32 v13, v0, 2, 1"); e("v_lshl_add_u32 v12, v13, 2, v12")
    e("s_lshl_b32 s26, s2, 5"); e("s_add_u32 s42, s14, s26"); e("s_addc_u32 s43, s15, 0")
    e("s_barrier")
    e("s_barrier")
    stamp(6)
    e(f"s_mov_b32 s50, {SPIN_MAX}")
    e("L_poll2:")
    for u in range(8):
        sb = "s[38:39]" if u < 4 else "s[40:41]"
        e(f"global_load_dwordx4 v[{32+4*u}:{35+4*u}], v8, {sb} offset:{(u%4)*1024} sc1")
    e("s_waitcnt vmcnt(0)")
    e("v_xor_b32 v24, s25, v33"); e("v_xor_b32 v25, s25, v35"); e("v_or_b32 v24, v24, v25")
    for u in range(1, 8):
        e(f"v_xor_b32 v25, s25, v{33+4*u}"); e(f"v_xor_b32 v26, s25, v{35+4*u}"); e("v_or3_b32 v24, v24, v25, v26")
    e("v_cmp_ne_u32 vcc, 0, v24")
    e("s_sub_u32 s50, s50, 1"); e("s_cbranch_scc1 L_poll2_done")
    e("s_cbranch_vccnz L_poll2")
    e("L_poll2_done:")
    stamp(7)
    for u in (1, 3, 5, 7):
        e(f"v_add_f32 v{32+4*(u-1)}, v{32+4*(u-1)}, v{32+4*u}"); e(f"v_add_f32 v{34+4*(u-1)}, v{34+4*(u-1)}, v{34+4*u}")
    for u in (2, 6):
        e(f"v_add_f32 v{32+4*(u-2)}, v{32+4*(u-2)}, v{32+4*u}"); e(f"v_add_f32 v{34+4*(u-2)}, v{34+4*(u-2)}, v{34+4*u}")
    e("v_add_f32 v32, v32, v48"); e("v_add_f32 v34, v34, v50")
    e("s_nop 1")
    e("v_add_f32_dpp v32, v32, v32 row_ror:8 row_mask:0xf bank_mask:0xf"); e("v_add_f32_dpp v34, v34, v34 row_ror:8 row_mask:0xf bank_mask:0xf")
    e("v_mov_b32 v33, v32"); e("v_mov_b32 v35, v34"); e("s_nop 1")
    e("v_permlane16_swap_b32 v32, v33"); e("v_permlane16_swap_b32 v34, v35")
    e("v_add_f32 v32, v32, v33"); e("v_add_f32 v34, v34, v35")
    e("v_mov_b32 v33, v32"); e("v_mov_b32 v35, v34"); e("s_nop 1")
    e("v_permlane32_swap_b32 v32, v33"); e("v_permlane32_swap_b32 v34, v35")
    e("v_add_f32 v32, v32, v33"); e("v_add_f32 v34, v34, v35")
    e("v_cvt_pk_bf16_f32 v32, v32, v34")
    e("s_mov_b64 exec, 0xff")
    e("global_store_dword v12, v32, s[42:43]")
    e("s_cmp_lg_u32 s2, 0"); e("s_cbranch_scc1 L_noepoch")
    e("s_add_u32 s51, s51, 1"); e("v_mov_b32 v33, s51"); e("v_mov_b32 v34, 0")
    e("s_mov_b64 exec, 1")
    e("global_store_dword v34, v33, s[18:19] sc1")
    e("L_noepoch:")
    e("s_mov_b64 exec, -1")
    stamp(8)
    if stamps:
        e("s_waitcnt vmcnt(0)")
        e("s_memrealtime s[78:79]")
        e("L_stamps:")
        e("s_waitcnt lgkmcnt(0)")
        if dbgst:
            e("v_mov_b32 v1, 0")
            e("s_not_b32 s60, s60"); e("v_mov_b32 v2, s60")
            e("s_mov_b64 exec, 1")
            e("global_atomic_umax v1, v2, s[16:17]")
            e("s_cmp_eq_u32 s24, 0"); e("s_cbranch_scc0 L_dbgc")
            for k, j in enumerate((1,2,3,4,6,7,9)):
                e(f"v_mov_b32 v2, s{60+2*j}"); e(f"global_atomic_umax v1, v2, s[16:17] offset:{4*(k+1)}")
            e("s_endpgm")
            e("L_dbgc:")
            for k, j in enumerate((1,2,3,4,5,6,7,8)):
                e(f"v_mov_b32 v2, s{60+2*j}"); e(f"global_atomic_umax v1, v2, s[16:17] offset:{4*(k+8)}")
            e("s_endpgm")
        e("s_mul_i32 s52, s2, 5"); e("s_add_u32 s52, s52, s24"); e("s_mul_i32 s52, s52, 80")
        e(f"s_add_u32 s52, s52, {STAMP}")
        e("s_add_u32 s54, s18, s52"); e("s_addc_u32 s55, s19, 0")
        e("v_mov_b32 v1, 0")
        for j in range(10):
            e(f"v_mov_b32 v2, s{60+2*j}"); e(f"v_mov_b32 v3, s{61+2*j}")
            e(f"global_store_dwordx2 v1, v[2:3], s[54:55] offset:{8*j}")
            e("s_nop 1")
    e("L_end:")
    e("s_endpgm")
    e('.section .rodata,"a"'); e(".p2align 6"); e(f".amdhsa_kernel {NAME}")
    e("  .amdhsa_next_free_vgpr 208"); e("  .amdhsa_next_free_sgpr 96"); e("  .amdhsa_accum_offset 208")
    e("  .amdhsa_group_segment_fixed_size 0"); e("  .amdhsa_kernarg_size 64"); e("  .amdhsa_user_sgpr_count 2")
    e("  .amdhsa_user_sgpr_kernarg_segment_ptr 1"); e("  .amdhsa_system_sgpr_workgroup_id_x 1"); e(".end_amdhsa_kernel")
    return "\n".join(L) + "\n"

if __name__ == "__main__":
    open("v1_nt.s", "w").write(gen(ld="nt", ldw="nt"))
    open("v1_pl.s", "w").write(gen(ld="", ldw=""))
    open("v1_nt_st.s", "w").write(gen(ld="nt", ldw="nt", stamps=True))
    open("v1_nt_dbg.s", "w").write(gen(ld="nt", ldw="nt", stamps=True, dbgst=True))
```
